```python
import torch

def _softmax(x, axis=-1):
    return torch.softmax(x, dim=axis)
def _gelu(x):
    return torch.nn.functional.gelu(x, approximate="tanh")
def _silu(x):
    return torch.nn.functional.silu(x)
def _sigmoid(x):
    return torch.sigmoid(x)
def _layernorm(x, axis=-1, eps=1e-5):
    m = x.mean(dim=axis, keepdim=True)
    v = x.var(dim=axis, keepdim=True, unbiased=False)
    return (x - m) / torch.sqrt(v + eps)
def _scatter_add(tgt, idx, src, axis=0):
    return tgt.clone().index_add_(axis, idx, src)
def _segment_sum(src, seg, n):
    out = torch.zeros((n,) + src.shape[1:], dtype=src.dtype)
    return out.index_add_(0, seg, src)
def _pad(x, pw):
    flat = tuple(v for pair in reversed(pw) for v in pair)
    return torch.nn.functional.pad(x, flat)

kernel_name = 'gated_mix__mha_block__sliding_local_dilated__prompt'

def setup_inputs():

    _w = (lambda a: (lambda t: t.to(torch.bfloat16) if t.is_floating_point() else t)(torch.as_tensor(a)))
    def _A_setup():
        B, S, D, H = 1, 2048, 448, 16
        return {
            "x": _w((lambda *s: torch.randn(*s, dtype=torch.bfloat16) * 0.05)(B, S, D)),
            "wqkv": _w((lambda *s: torch.randn(*s, dtype=torch.bfloat16) * 1.6)(D, 3 * D)),
            "wo": _w((lambda *s: torch.randn(*s, dtype=torch.bfloat16) * 0.1)(D, D)),
        }
    _A_in = _A_setup()

    def _B_setup():
        B, S, D = 1, 2048, 448
        return {
            "x": _w((lambda *s: torch.randn(*s, dtype=torch.bfloat16) * 0.05)(B, S, D)),
            "wqkv": _w((lambda *s: torch.randn(*s, dtype=torch.bfloat16) * 1.6)(D, 3 * D)),
            "wo": _w((lambda *s: torch.randn(*s, dtype=torch.bfloat16) * 0.05)(D, D)),
        }
    _B_in = _B_setup()

    return {
        "A_x": _A_in["x"],
        "A_wqkv": _A_in["wqkv"],
        "A_wo": _A_in["wo"],
        "B_x": _B_in["x"],
        "B_wqkv": _B_in["wqkv"],
        "B_wo": _B_in["wo"],
        "gate_w": _w((lambda *s: torch.randn(*s, dtype=torch.bfloat16) * 0.05)(448) * 16.0),
    }

def reference(A_x, A_wqkv, A_wo, B_x, B_wqkv, B_wo, gate_w):
    def _A_ref(x, wqkv, wo):
        B, S, D = x.shape
        H = 16
        Dh = D // H
        qkv = (lambda x, *d: x.permute(*d))((x @ wqkv).reshape(B, S, 3, H, Dh), 2, 0, 3, 1, 4)
        q, k, v = qkv[0], qkv[1], qkv[2]
        scores = torch.einsum("bhqd,bhkd->bhqk", q, k) * (Dh ** -0.5)
        p = _softmax(scores, axis=-1)
        o = torch.einsum("bhqk,bhkd->bhqd", p, v)
        return (lambda x, *d: x.permute(*d))(o, 0, 2, 1, 3).reshape(B, S, D) @ wo

    def _B_ref(x, wqkv, wo):
        B, S, D = x.shape
        H = 16; Dh = D // H
        W, dil = 8, 2
        qkv = (lambda x, *d: x.permute(*d))((x @ wqkv).reshape(B, S, 3, H, Dh), 2, 0, 3, 1, 4)
        q, k, v = qkv[0], qkv[1], qkv[2]
        scale = Dh ** -0.5
        pos = torch.arange(S)
        off = torch.arange(W) * dil
        idx = pos[:, None] - off[None, :]
        mask = idx >= 0
        idx_c = torch.where(mask, idx, 0).reshape(-1)
        kg = k[:, :, idx_c, :].reshape(B, H, S, W, Dh)
        vg = v[:, :, idx_c, :].reshape(B, H, S, W, Dh)
        logits = torch.einsum("bhsd,bhswd->bhsw", q, kg) * scale
        logits = torch.where(mask[None, None, :, :], logits, -1e9)
        attn = _softmax(logits, axis=-1)
        o = torch.einsum("bhsw,bhswd->bhsd", attn, vg)
        return (lambda x, *d: x.permute(*d))(o, 0, 2, 1, 3).reshape(B, S, D) @ wo

    x = A_x
    g = _sigmoid((x * gate_w).sum(-1, keepdims=True))
    a = _A_ref(x, A_wqkv, A_wo)
    b = _B_ref(x, B_wqkv, B_wo)
    return g * a + (1 - g) * b
```

```python
import re

REG_RE = re.compile(r'\b([vsa])(\d+)\b|\b([vsa])\[(\d+):(\d+)\]|\b(vcc|exec|m0|scc)\b')

def regs_of(tok):
    out = []
    for m in REG_RE.finditer(tok):
        if m.group(1):
            out.append((m.group(1), int(m.group(2))))
        elif m.group(3):
            out += [(m.group(3), i) for i in range(int(m.group(4)), int(m.group(5)) + 1)]
        else:
            out.append((m.group(6), 0))
    return out

TRANS = ('v_exp_f32', 'v_log_f32', 'v_rcp_f32', 'v_rsq_f32', 'v_sqrt_f32', 'v_sin_f32', 'v_cos_f32', 'v_rcp_iflag_f32', 'v_exp_f16')

def split_ops(s):
    out, depth, cur = [], 0, ''
    for ch in s:
        if ch == '[': depth += 1
        if ch == ']': depth -= 1
        if ch == ',' and depth == 0:
            out.append(cur.strip()); cur = ''
        else:
            cur += ch
    if cur.strip(): out.append(cur.strip())
    return out

class Ins:
    __slots__ = ('text', 'op', 'w', 'r', 'cls', 'passes', 'srcc', 'label', 'ws', 'ab', 'wide_store', 'dpp', 'sdwa')
    def __init__(self, text):
        self.text = text
        self.label = None
        t = text.split(';')[0].strip()
        self.w, self.r, self.srcc, self.ab = [], [], [], []
        self.passes = 0
        self.ws = 1
        self.wide_store = False
        self.dpp = False
        self.sdwa = False
        if t.endswith(':'):
            self.op = 'label'; self.cls = 'label'; self.label = t[:-1]; self.ws = 0
            return
        if t == '' or t.startswith('.'):
            self.op = 'directive'; self.cls = 'directive'; self.ws = 0
            return
        parts = t.split(None, 1)
        op = parts[0]
        self.op = op
        rest = parts[1] if len(parts) > 1 else ''
        ops = split_ops(rest)
        R = [regs_of(o.split(' ')[0]) if not o.startswith('-') and not o.startswith('abs') and not o.startswith('|') else regs_of(o) for o in ops]
        base = op.replace('_e32', '').replace('_e64', '').replace('_dpp', '').replace('_sdwa', '')
        if 'row_' in rest or 'quad_perm' in rest or op.endswith('_dpp'): self.dpp = True
        if op.endswith('_sdwa'): self.sdwa = True
        if op.startswith('v_mfma'):
            self.cls = 'mfma'
            self.passes = 8 if '32x32x16' in op else (4 if '16x16x32' in op else None)
            assert self.passes, op
            self.w = R[0]; self.ab = R[1] + R[2]; self.srcc = R[3]; self.r = self.ab + self.srcc
        elif op.startswith('v_cmp'):
            self.cls = 'valu'; self.w = R[0]; self.r = sum(R[1:], [])
            if op.startswith('v_cmpx'): self.w = self.w + [('exec', 0)]
        elif base in ('v_readfirstlane_b32', 'v_readlane_b32'):
            self.cls = 'valu'; self.w = R[0]; self.r = sum(R[1:], [])
        elif op.startswith('v_permlane') and 'swap' in op:
            self.cls = 'valu'; self.w = R[0] + R[1]; self.r = R[0] + R[1]
        elif base in ('v_add_co_u32', 'v_sub_co_u32', 'v_addc_co_u32', 'v_subb_co_u32'):
            self.cls = 'valu'; self.w = R[0] + R[1]; self.r = sum(R[2:], [])
        elif op.startswith('v_'):
            self.cls = 'trans' if base in TRANS else 'valu'
            self.w = R[0]; self.r = sum(R[1:], [])
            if base.startswith('v_fmac') or base.startswith('v_dot2c') or base.startswith('v_pk_fmac') or 'UNUSED_PRESERVE' in rest or self.dpp or base == 'v_writelane_b32':
                self.r = self.r + R[0]
            if base == 'v_cndmask_b32' and len(ops) == 3: self.r = self.r + [('vcc', 0)]
        elif op.startswith('ds_read') or op.startswith('ds_bpermute') or op.startswith('ds_swizzle') or op.startswith('ds_permute'):
            self.cls = 'ds'; self.w = R[0]; self.r = sum(R[1:], [])
        elif op.startswith('ds_'):
            self.cls = 'ds'; self.r = sum(R, [])
        elif op.startswith('buffer_load') or op.startswith('global_load'):
            self.cls = 'vmem'
            if ' lds' in rest or 'load_lds' in op:
                self.r = sum(R, []) + [('m0', 0)]
            else:
                self.w = R[0]; self.r = sum(R[1:], [])
        elif op.startswith('buffer_store') or op.startswith('global_store'):
            self.cls = 'vmem'; self.r = sum(R, [])
            if 'x4' in op or 'x3' in op:
                self.wide_store = True
                self.ab = R[0] if op.startswith('buffer') else R[1]
        elif op.startswith('buffer_atomic') or op.startswith('global_atomic'):
            self.cls = 'vmem'; self.r = sum(R, [])
            if 'sc0' in rest: self.w = R[0]
        elif op.startswith('buffer_') or op.startswith('global_'):
            self.cls = 'vmem'
        elif op == 's_nop':
            self.cls = 'salu'; self.ws = int(ops[0], 0) + 1
        elif op in ('s_waitcnt', 's_barrier', 's_endpgm', 's_setprio', 's_branch', 's_sleep') or op.startswith('s_cbranch'):
            self.cls = 'salu'
        elif op.startswith('s_cmp') or op.startswith('s_bitcmp'):
            self.cls = 'salu'; self.r = sum(R, []); self.w = [('scc', 0)]
        elif op.startswith('s_load') or op.startswith('s_buffer_load') or op.startswith('s_memtime') or op.startswith('s_memrealtime') or op.startswith('s_atomic'):
            self.cls = 'smem'; self.w = R[0]; self.r = sum(R[1:], [])
        elif op.startswith('s_'):
            self.cls = 'salu'; self.w = R[0]; self.r = sum(R[1:], [])
            if 'saveexec' in op: self.w = self.w + [('exec', 0)]
        else:
            raise ValueError('unknown op ' + text)

def is_valu(i): return i.cls in ('valu', 'trans')

def required(p, c):
    need = 0
    pw, cr, cw = set(p.w), set(c.r), set(c.w)
    pwv = {x for x in pw if x[0] in 'va'}
    pws = {x for x in pw if x[0] == 's' or x[0] == 'vcc'}
    if is_valu(p):
        if c.cls == 'mfma' and pwv & cr: need = max(need, 2)
        if pws:
            if c.cls == 'vmem' and pws & cr: need = max(need, 5)
            if is_valu(c) and pws & cr:
                need = max(need, 4 if c.op.startswith(('v_readlane', 'v_writelane')) else 2)
            if c.cls in ('salu', 'smem') and pws & cr: need = max(need, 1)
        if ('exec', 0) in pw:
            if c.cls == 'mfma': need = max(need, 4)
            if c.op.startswith(('v_readlane', 'v_readfirstlane', 'v_writelane', 'v_permlane')): need = max(need, 4)
            if c.dpp: need = max(need, 5)
        if c.op.startswith(('v_readlane', 'v_readfirstlane')) and pwv & cr: need = max(need, 1)
        if c.op.startswith('v_permlane') and pwv & cr: need = max(need, 2)
        if c.dpp and pwv & cr: need = max(need, 2)
        if p.cls == 'trans' and c.cls == 'valu' and pwv & cr: need = max(need, 1)
        if p.cls == 'trans' and c.cls in ('vmem', 'ds') and pwv & cr: need = max(need, 1)
        if (p.sdwa or 'op_sel' in p.text) and is_valu(c) and pwv & (cr | cw): need = max(need, 1)
    if p.cls == 'mfma':
        n = p.passes
        if c.cls == 'mfma':
            if pwv & set(c.ab): need = max(need, {4: 8, 8: 12}[n])
            ov = pwv & set(c.srcc)
            if ov:
                if list(p.w) == list(c.srcc) and p.passes == c.passes: pass
                else: need = max(need, {4: 6, 8: 10}[n])
            if pwv & cw and not ov:
                need = max(need, {4: 6, 8: 10}[n])
        elif (is_valu(c) or c.cls in ('vmem', 'ds')) and pwv & (cr | cw):
            need = max(need, {4: 8, 8: 12}[n])
        if is_valu(c) and set(p.srcc) & cw: need = max(need, {4: 3, 8: 7}[n])
    if p.cls == 'salu' and ('m0', 0) in pw and c.cls == 'vmem' and ('m0', 0) in cr: need = max(need, 1)
    if p.wide_store and set(p.ab) & cw:
        need = max(need, 2 if is_valu(c) else 1)
    return need

class Asm:
    def __init__(self):
        self.ins = []
    def __call__(self, text):
        for line in text.split('\n'):
            line = line.strip()
            if line == '' or line.startswith(';'):
                if line: self.ins.append(Ins('.; ' + line)); self.ins[-1].text = line
                continue
            self.ins.append(Ins(line))
    def label(self, name): self(name + ':')
    def finalize(self, maxdist=21):
        out = []
        for c in self.ins:
            if c.cls in ('label', 'directive'):
                out.append(c); continue
            dist = 0; pad = 0
            for p in reversed(out):
                if p.cls in ('label', 'directive'): continue
                need = required(p, c)
                if need > dist: pad = max(pad, need - dist)
                dist += p.ws
                if dist >= maxdist: break
            while pad > 0:
                k = min(pad, 16)
                out.append(Ins(f's_nop {k-1}')); pad -= k
            out.append(c)
        idx = {i.label: n for n, i in enumerate(out) if i.cls == 'label'}
        problems = []
        for n, b in enumerate(out):
            if b.op == 's_branch' or b.op.startswith('s_cbranch'):
                tgt = b.text.split()[1]
                t = idx[tgt]
                pre = [i for i in out[max(0, n - 40):n + 1] if i.cls not in ('label', 'directive')]
                post = [i for i in out[t:t + 40] if i.cls not in ('label', 'directive')]
                d0 = 0
                for ci, c in enumerate(post):
                    dist = d0
                    for p in reversed(pre):
                        need = required(p, c)
                        if need > dist: problems.append((b.text, p.text, c.text, need, dist))
                        dist += p.ws
                        if dist >= maxdist: break
                    d0 += c.ws
                    if d0 >= maxdist: break
                    if c.op == 's_branch' or c.op == 's_endpgm': break
        if problems:
            for p in problems: print('HAZARD across branch:', p)
            raise SystemExit('hazard across branch edge')
        self.out = out
        return '\n'.join(('    ' + i.text) if i.cls not in ('label',) else i.text for i in out) + '\n'
    def max_vgpr(self):
        m = -1
        for i in self.ins:
            for x in i.w + i.r:
                if x[0] == 'v': m = max(m, x[1])
        return m + 1
    def max_sgpr(self):
        m = -1
        for i in self.ins:
            for x in i.w + i.r:
                if x[0] == 's': m = max(m, x[1])
        return m + 1

def v(i, n=1): return f'v{i}' if n == 1 else f'v[{i}:{i+n-1}]'
def s(i, n=1): return f's{i}' if n == 1 else f's[{i}:{i+n-1}]'
```

```python
import sys, os
sys.path.insert(0, os.path.dirname(__file__))
from asmlib import *

HEADER = """; Kernarg layout for this problem (80 bytes, ptrs only, base s[0:1]):
"""

def compose(kernels):
    out = HEADER
    for name, a, grid, block, lds in kernels:
        out += f"; @launch kernel={name} grid=({grid},1,1) block=({block},1,1) lds={lds}\n"
    out += '.amdgcn_target "amdgcn-amd-amdhsa--gfx950"\n.text\n'
    seen = set()
    for name, a, grid, block, lds in kernels:
        if name in seen: continue
        seen.add(name)
        out += f".globl {name}\n.p2align 8\n.type {name},@function\n"
        out += a.finalize()
    out += '.section .rodata,"a"\n'
    seen = set()
    for name, a, grid, block, lds in kernels:
        if name in seen: continue
        seen.add(name)
        nv = max(a.max_vgpr(), 8)
        acc = (nv + 3) // 4 * 4
        out += f""".p2align 6
.amdhsa_kernel {name}
  .amdhsa_next_free_vgpr {nv}
  .amdhsa_next_free_sgpr {max(a.max_sgpr(), 8)}
  .amdhsa_accum_offset {acc}
  .amdhsa_group_segment_fixed_size 0
  .amdhsa_kernarg_size 80
  .amdhsa_user_sgpr_count 2
  .amdhsa_user_sgpr_kernarg_segment_ptr 1
  .amdhsa_system_sgpr_workgroup_id_x 1
.end_amdhsa_kernel
"""
    return out
```

```python
from asmlib import *
import math, struct

MB = 1 << 20
WS_Q = 0
WS_KV = 2 * MB
WS_MSTRIDE = 6 * MB
WS_OA = 12 * MB
WS_OB = 14 * MB
WS_G = 16 * MB
WS_BYTES = 17 * MB
X_BYTES = 2048 * 896
W_BYTES = 448 * 2688
QSCALE = math.log2(math.e) / math.sqrt(28.0)
def f32bits(x): return struct.unpack('<I', struct.pack('<f', x))[0]

def srd(a, d, ptr, nbytes):
    a(f's_mov_b32 s{d}, s{ptr}')
    a(f's_and_b32 s{d+1}, s{ptr+1}, 0xffff')
    a(f's_mov_b32 s{d+2}, {nbytes}')
    a(f's_mov_b32 s{d+3}, 0x00020000')

SLOT = 40960
STAMP = False
def stamp(a, idx):
    if not STAMP: return
    a(f's_memtime s[{70+2*idx}:{71+2*idx}]')
def stamp_flush(a, n, wsrd='s[24:27]', wave='s36'):
    if not STAMP: return
    a('s_memrealtime s[62:63]')
    a('s_waitcnt lgkmcnt(0)')
    a('s_lshl_b32 s64, s2, 10')
    a(f's_lshl_b32 s65, {wave}, 7')
    a('s_add_u32 s64, s64, s65')
    a(f's_add_u32 s64, s64, {16*MB + 65536}')
    a('v_mov_b32 v252, 0')
    a('s_mov_b64 exec, 1')
    for i in range(n):
        a(f'v_mov_b32 v250, s{70+2*i}')
        a(f'v_mov_b32 v251, s{62 if i else 60}')
        a(f'buffer_store_dwordx2 v[250:251], v252, {wsrd}, s64 offen offset:{8*i}')
def gen_k1(name='k1_kernel'):
    a = Asm()
    a(f'{name}:')
    if STAMP: a('s_memrealtime s[60:61]')
    stamp(a, 0)
    a('s_cmp_ge_u32 s2, 256')
    a('s_cbranch_scc1 K1_END')
    a('s_load_dwordx4 s[4:7], s[0:1], 0')
    a('s_load_dwordx2 s[8:9], s[0:1], 32')
    a('s_load_dwordx2 s[10:11], s[0:1], 48')
    a('s_load_dwordx2 s[12:13], s[0:1], 72')
    a('s_and_b32 s40, s2, 7')
    a('s_lshr_b32 s41, s2, 3')
    a('s_and_b32 s32, s40, 1')
    a('s_lshl_b32 s32, s32, 3')
    a('s_and_b32 s42, s41, 7')
    a('s_add_u32 s32, s32, s42')
    a('s_lshr_b32 s33, s40, 1')
    a('s_lshl_b32 s33, s33, 2')
    a('s_lshr_b32 s42, s41, 3')
    a('s_add_u32 s33, s33, s42')
    a('s_lshr_b32 s34, s33, 3')
    a('s_and_b32 s35, s33, 7')
    a('v_lshrrev_b32 v1, 6, v0')
    a('v_and_b32 v0, 63, v0')
    a('v_readfirstlane_b32 s36, v1')
    a('s_waitcnt lgkmcnt(0)')
    srd(a, 16, 4, X_BYTES)
    a('s_cmp_eq_u32 s34, 0')
    a('s_cselect_b32 s6, s6, s8')
    a('s_cselect_b32 s7, s7, s9')
    srd(a, 20, 6, W_BYTES)
    srd(a, 24, 12, WS_BYTES)
    srd(a, 28, 10, 896)
    stamp(a, 1)
    a('s_cmp_ge_u32 s36, 4')
    a('s_cbranch_scc1 K1_LOADER')
    a('s_and_b32 s37, s36, 1')
    a('s_lshr_b32 s38, s36, 1')
    a('s_lshl_b32 s39, s35, 1')
    a('s_add_u32 s39, s39, s38')
    a('v_and_b32 v1, 31, v0')
    a('v_lshrrev_b32 v2, 5, v0')
    a('v_bfe_u32 v3, v0, 1, 3')
    a('v_lshlrev_b32 v4, 7, v1')
    a('s_lshl_b32 s40, s37, 13')
    a('v_add_u32 v4, s40, v4')
    XA, XA2, WA, WA2, VL16, VPAD = 8, 12, 16, 17, 18, 19
    for ks in range(4):
        a(f'v_or_b32 v5, {2*ks}, v2')
        a('v_xor_b32 v5, v5, v3')
        a(f'v_lshl_add_u32 v{XA+ks}, v5, 4, v4')
        a(f'v_add_u32 v{XA2+ks}, {2*SLOT}, v{XA+ks}')
    a('v_bfe_u32 v5, v0, 2, 2')
    a('v_lshl_add_u32 v5, v2, 3, v5')
    a('v_mul_u32_u24 v5, 192, v5')
    a('v_bfe_u32 v6, v0, 4, 1')
    a('v_lshl_add_u32 v5, v6, 5, v5')
    a('v_and_b32 v6, 3, v0')
    a('v_lshl_add_u32 v5, v6, 3, v5')
    a('s_mul_i32 s40, s38, 12296')
    a('s_add_u32 s40, s40, 16384')
    a(f'v_add_u32 v{WA}, s40, v5')
    a(f'v_add_u32 v{WA2}, {2*SLOT}, v{WA}')
    a(f'v_lshlrev_b32 v{VL16}, 4, v0')
    a('v_cmp_eq_u32 vcc, 28, v1')
    a(f'v_mov_b32 v{VPAD}, 0')
    a('v_mov_b32 v5, 0x3f803f80')
    a(f'v_cndmask_b32 v{VPAD}, v{VPAD}, v5, vcc')
    a('s_lshl_b32 s41, s32, 2')
    a('s_lshl_b32 s42, s37, 1')
    a('s_add_u32 s41, s41, s42')
    a(f's_mul_i32 s42, s34, {WS_MSTRIDE}')
    a('s_mul_i32 s43, s39, 3')
    variants = [('qqq', 0, 4), ('qkk', 5, 5), ('kkk', 6, 9), ('kkv', 10, 10), ('vvv', 11, 15)]
    for vn, lo, hi in variants[:-1]:
        a(f's_cmp_le_u32 s39, {hi}')
        a(f's_cbranch_scc1 K1_V_{vn}')
    a('s_branch K1_V_vvv')
    FR = 20
    ACC = 60
    def acc(t2, i): return ACC + (t2 * 3 + i) * 16
    def reads(n):
        st, ks = n // 4, n % 4
        slot = st % 4
        b = FR + (n & 1) * 20
        xa = (XA if slot < 2 else XA2) + ks
        wa = WA if slot < 2 else WA2
        so = (slot & 1) * SLOT
        L = []
        L.append(f'ds_read_b128 {v(b,4)}, v{xa} offset:{so}')
        for u in range(2): L.append(f'ds_read_b64_tr_b16 {v(b+8+2*u,2)}, v{wa} offset:{so+ks*3072+u*768}')
        L.append(f'ds_read_b128 {v(b+4,4)}, v{xa} offset:{so+4096}')
        for i in (1, 2):
            for u in range(2): L.append(f'ds_read_b64_tr_b16 {v(b+8+4*i+2*u,2)}, v{wa} offset:{so+ks*3072+u*768+i*56}')
        return L
    for vn, lo, hi in variants:
        a(f'K1_V_{vn}:')
        for i in range(3):
            a(f's_add_u32 s40, s43, {i}')
            a('s_and_b32 s40, s40, 15')
            a('s_lshl_b32 s40, s40, 6')
            a('s_add_u32 s40, s40, s41')
            if vn[i] == 'q':
                a('s_lshl_b32 s40, s40, 11')
                a(f's_add_u32 s{44+i}, s40, s42')
            else:
                a('s_lshl_b32 s40, s40, 12')
                a('s_add_u32 s40, s40, s42')
                a(f's_add_u32 s{44+i}, s40, {WS_KV + (2048 if vn[i]=="v" else 0)}')
        a('s_barrier')
        stamp(a, 2)
        for r in reads(0): a(r)
        for n in range(28):
            b = FR + (n & 1) * 20
            nxt = reads(n + 1) if n + 1 < 28 else []
            a('s_waitcnt lgkmcnt(0)')
            order = [(0, 0), (1, 0), (0, 1), (1, 1), (0, 2), (1, 2)]
            sched = [2, 2, 2, 2, 0, 0]
            for mi, (t2, i) in enumerate(order):
                xf, wf = v(b + 4 * t2, 4), v(b + 8 + 4 * i, 4)
                A, B = (wf, xf) if vn[i] != 'v' else (xf, wf)
                d = v(acc(t2, i), 16)
                a(f'v_mfma_f32_32x32x16_bf16 {d}, {A}, {B}, {d if n else 0}')
                if mi == 0 and nxt and (n + 1) % 4 == 0: a('s_barrier')
                for _ in range(sched[mi]):
                    if nxt: a(nxt.pop(0))
        stamp(a, 3)
        a(f's_mov_b32 s48, {f32bits(QSCALE)}')
        for i in range(3):
            for t2 in range(2):
                c = acc(t2, i)
                if vn[i] == 'q':
                    for r in range(16): a(f'v_mul_f32 v{c+r}, s48, v{c+r}')
                for j in range(8): a(f'v_cvt_pk_bf16_f32 v{c+j}, v{c+2*j}, v{c+2*j+1}')
        if 'q' in vn or 'k' in vn:
            a('s_mov_b32 exec_lo, 0')
            for i in range(3):
                for t2 in range(2):
                    c = acc(t2, i)
                    if vn[i] == 'q':
                        a(f'v_mov_b32 v{c+6}, 0'); a(f'v_mov_b32 v{c+7}, 0')
                    elif vn[i] == 'k':
                        a(f'v_mov_b32 v{c+6}, 0x3f803f80'); a(f'v_mov_b32 v{c+7}, 0x3f80')
        if 'v' in vn:
            a('s_mov_b32 exec_lo, 0xf0000000')
            a('s_mov_b32 exec_hi, 0xf0000000')
            for i in range(3):
                if vn[i] == 'v':
                    for t2 in range(2):
                        c = acc(t2, i)
                        for j in range(8): a(f'v_mov_b32 v{c+j}, v{VPAD}')
        a('s_mov_b64 exec, -1')
        for i in range(3):
            for t2 in range(2):
                c = acc(t2, i)
                st = 2048 if vn[i] == 'q' else 4096
                if t2: a(f's_add_u32 s{44+i}, s{44+i}, {st}')
                a(f'buffer_store_dwordx4 {v(c,4)}, v{VL16}, s[24:27], s{44+i} offen')
                a(f'buffer_store_dwordx4 {v(c+4,4)}, v{VL16}, s[24:27], s{44+i} offen offset:1024')
        stamp(a, 4)
        if STAMP: a('s_waitcnt vmcnt(0)')
        stamp(a, 5)
        stamp_flush(a, 6)
        a('s_endpgm')
    a('K1_LOADER:')
    a('s_sub_u32 s37, s36, 4')
    a('s_lshl_b32 s40, s32, 7')
    a('s_lshl_b32 s41, s33, 3')
    a('s_add_u32 s40, s40, s41')
    a('s_lshl_b32 s41, s37, 1')
    a('s_add_u32 s50, s40, s41')
    a('s_mul_i32 s51, s50, 896')
    a('v_lshlrev_b32 v1, 4, v0')
    a('v_mov_b32 v2, 0x40000000')
    a('v_cmp_gt_u32 vcc, 56, v0')
    a('v_cndmask_b32 v1, v2, v1, vcc')
    a('buffer_load_dwordx4 v[20:23], v1, s[16:19], s51 offen')
    a('buffer_load_dwordx4 v[24:27], v1, s[16:19], s51 offen offset:896')
    a('buffer_load_dwordx4 v[28:31], v1, s[28:31], 0 offen')
    a('v_lshrrev_b32 v2, 3, v0')
    a('v_mul_u32_u24 v2, 896, v2')
    a('v_and_b32 v3, 7, v0')
    a('v_lshrrev_b32 v4, 4, v0')
    a('v_xor_b32 v5, v3, v4')
    a('v_lshl_add_u32 v8, v5, 4, v2')
    a('v_xor_b32 v5, 4, v5')
    a('v_lshl_add_u32 v9, v5, 4, v2')
    for t in range(3):
        a(f'v_add_u32 v2, {64*t}, v0')
        a('v_mul_u32_u24 v3, 43691, v2')
        a('v_lshrrev_b32 v3, 19, v3')
        a('v_mul_u32_u24 v4, 12, v3')
        a('v_sub_u32 v4, v2, v4')
        a('v_mul_u32_u24 v3, 2688, v3')
        a(f'v_lshl_add_u32 v{10+t}, v4, 4, v3')
    a('s_lshl_b32 s40, s32, 7')
    a('s_lshl_b32 s41, s37, 5')
    a('s_add_u32 s40, s40, s41')
    a('s_mul_i32 s44, s40, 896')
    a('s_lshl_b32 s45, s37, 12')
    a('s_lshr_b32 s40, s37, 1')
    a('s_and_b32 s41, s37, 1')
    a(f's_mul_i32 s46, s41, {32*2688}')
    a('s_mul_i32 s42, s35, 336')
    a('s_add_u32 s46, s46, s42')
    a('s_mul_i32 s42, s40, 160')
    a('s_add_u32 s46, s46, s42')
    a('s_mul_i32 s47, s40, 12288')
    a(f's_mul_i32 s42, s41, {32*192}')
    a('s_add_u32 s47, s47, s42')
    a('s_add_u32 s47, s47, 16384')
    def issue(st):
        slot = st % 4
        for jj in range(4):
            a(f's_add_u32 m0, s45, {slot*SLOT + jj*1024}')
            a(f's_add_u32 s48, s44, {st*128 + jj*8*896}')
            a(f'buffer_load_dwordx4 v{8 + (jj&1)}, s[16:19], s48 offen lds')
        for rr in range(2):
            for t in range(3):
                a(f's_add_u32 m0, s47, {slot*SLOT + rr*16*192 + t*1024}')
                a(f's_add_u32 s48, s46, {(st*64 + rr*16)*2688}')
                a(f'buffer_load_dwordx4 v{10+t}, s[20:23], s48 offen lds')
    issue(0)
    stamp(a, 2)
    issue(1)
    stamp(a, 3)
    issue(2)
    stamp(a, 4)
    issue(3)
    stamp(a, 5)
    a('s_waitcnt vmcnt(30)')
    a('s_barrier')
    for row in range(2):
        xr = 20 + 4 * row
        z = 32 + row
        a(f'v_mov_b32 v{z}, 0')
        for d in range(4):
            a(f'v_lshlrev_b32 v34, 16, v{xr+d}')
            a(f'v_lshlrev_b32 v35, 16, v{28+d}')
            a(f'v_fmac_f32 v{z}, v34, v35')
            a(f'v_and_b32 v34, 0xffff0000, v{xr+d}')
            a(f'v_and_b32 v35, 0xffff0000, v{28+d}')
            a(f'v_fmac_f32 v{z}, v34, v35')
        for sh in (8, 4, 2, 1):
            a(f'v_add_f32_dpp v{z}, v{z}, v{z} row_ror:{sh} row_mask:0xf bank_mask:0xf')
        a(f'v_readlane_b32 s52, v{z}, 0')
        a(f'v_readlane_b32 s53, v{z}, 16')
        a(f'v_readlane_b32 s54, v{z}, 32')
        a(f'v_readlane_b32 s55, v{z}, 48')
        a(f'v_mov_b32 v{z}, s52')
        a(f'v_add_f32 v{z}, s53, v{z}')
        a(f'v_add_f32 v{z}, s54, v{z}')
        a(f'v_add_f32 v{z}, s55, v{z}')
        a(f'v_mul_f32 v{z}, {f32bits(-math.log2(math.e))}, v{z}')
        a(f'v_exp_f32 v{z}, v{z}')
        a(f'v_add_f32 v{z}, 1.0, v{z}')
        a(f'v_rcp_f32 v{z}, v{z}')
    a('s_lshl_b32 s52, s50, 2')
    a(f's_add_u32 s52, s52, {WS_G}')
    a('v_mov_b32 v34, 0')
    a('s_mov_b64 exec, 1')
    a('buffer_store_dwordx2 v[32:33], v34, s[24:27], s52 offen')
    a('s_mov_b64 exec, -1')
    a('s_waitcnt vmcnt(21)')
    a('s_barrier')
    issue(4)
    a('s_waitcnt vmcnt(21)')
    a('s_barrier')
    issue(5)
    a('s_waitcnt vmcnt(21)')
    a('s_barrier')
    issue(6)
    a('s_waitcnt vmcnt(20)')
    a('s_barrier')
    a('s_waitcnt vmcnt(10)')
    a('s_barrier')
    a('s_waitcnt vmcnt(0)')
    a('s_barrier')
    stamp_flush(a, 6)
    a('K1_END:')
    a('s_endpgm')
    return a

if __name__ == '__main__':
    a = gen_k1()
    t = a.finalize()
    print(len(t.splitlines()), a.max_vgpr(), a.max_sgpr())
```

```python
from asmlib import *
from k1 import *
import k1

NS = 8
STG = 16384
SCR = NS * STG
FLAG = SCR + 16384
LDS_BYTES = FLAG + 64
LTHR = 2.0 ** 40

def lane_mask(fn):
    m = 0
    for l in range(64):
        if fn(l & 31, l >> 5): m |= 1 << l
    return m

def gen_k2(name='k2_kernel'):
    a = Asm()
    stamp, stamp_flush = k1.stamp, k1.stamp_flush
    a(f'{name}:')
    if k1.STAMP: a('s_memrealtime s[60:61]')
    stamp(a, 0)
    a('s_cmp_ge_u32 s2, 256')
    a('s_cbranch_scc1 K2_END')
    a('s_load_dwordx2 s[12:13], s[0:1], 72')
    a('s_and_b32 s40, s2, 7')
    a('s_lshr_b32 s41, s2, 3')
    a('s_lshl_b32 s32, s40, 1')
    a('s_and_b32 s42, s41, 1')
    a('s_add_u32 s32, s32, s42')
    a('s_lshr_b32 s33, s41, 1')
    a('v_lshrrev_b32 v1, 6, v0')
    a('v_and_b32 v0, 63, v0')
    a('v_readfirstlane_b32 s36, v1')
    VL16, LA, LA2, VM, T1, T2, T3, T4 = 2, 3, 4, 5, 6, 7, 8, 9
    Q, K, V, P, S, O, BL = 12, 20, 28, 36, 44, 76, 92
    BQ, BK0, BV0, BK1, BV1 = BL, BL + 8, BL + 16, BL + 24, BL + 32
    a(f'v_lshlrev_b32 v{VL16}, 4, v0')
    a('s_and_b32 s37, s36, 3')
    a('s_lshr_b32 s38, s36, 2')
    a('s_lshl_b32 s39, s33, 2')
    a('s_add_u32 s39, s39, s37')
    a('s_lshl_b32 s40, s38, 13')
    a(f'v_add_u32 v{LA}, s40, v{VL16}')
    a(f'v_add_u32 v{LA2}, 0x10000, v{LA}')
    a('s_lshl_b32 s43, s32, 6')
    a('s_add_u32 s43, s43, s39')
    a('s_lshl_b32 s44, s43, 11')
    a('s_lshl_b32 s45, s36, 11')
    a('s_mov_b32 s47, 0')
    a('s_waitcnt lgkmcnt(0)')
    srd(a, 24, 12, WS_BYTES)
    a('s_lshl_b32 s40, s32, 18')
    a(f's_add_u32 s40, s40, {WS_KV}')
    a('s_add_u32 s16, s12, s40')
    a('s_addc_u32 s17, s13, 0')
    a('s_and_b32 s17, s17, 0xffff')
    a('s_mov_b32 s18, 0x40000')
    a('s_mov_b32 s19, 0x00020000')
    stamp(a, 1)
    a('K2_RESTART:')
    a(f'buffer_load_dwordx4 {v(Q,4)}, v{VL16}, s[24:27], s44 offen')
    a(f'buffer_load_dwordx4 {v(Q+4,4)}, v{VL16}, s[24:27], s44 offen offset:1024')
    def dma(slot, soff_reg_or_none, st=None):
        a(f's_add_u32 m0, s45, {slot*STG}')
        if st is not None:
            a(f's_add_u32 s46, s45, {st*STG}')
        else:
            a(f's_add_u32 s46, s46, {STG}')
        a(f'buffer_load_dwordx4 v{VL16}, s[16:19], s46 offen lds')
        a(f'buffer_load_dwordx4 v{VL16}, s[16:19], s46 offen offset:1024 lds')
    dma(0, None, 0)
    a('s_cmp_eq_u32 s38, 0')
    a('s_cbranch_scc1 K2_NOBL')
    a(f's_add_u32 s40, s44, {WS_MSTRIDE}')
    a(f'buffer_load_dwordx4 {v(BQ,4)}, v{VL16}, s[24:27], s40 offen')
    a(f'buffer_load_dwordx4 {v(BQ+4,4)}, v{VL16}, s[24:27], s40 offen offset:1024')
    a('s_lshl_b32 s40, s43, 12')
    a(f's_add_u32 s40, s40, {WS_MSTRIDE + WS_KV}')
    a(f'buffer_load_dwordx4 {v(BK0,4)}, v{VL16}, s[24:27], s40 offen')
    a(f'buffer_load_dwordx4 {v(BK0+4,4)}, v{VL16}, s[24:27], s40 offen offset:1024')
    a(f'buffer_load_dwordx4 {v(BV0,4)}, v{VL16}, s[24:27], s40 offen offset:2048')
    a(f'buffer_load_dwordx4 {v(BV0+4,4)}, v{VL16}, s[24:27], s40 offen offset:3072')
    a('s_sub_u32 s40, s40, 4096')
    a(f'buffer_load_dwordx4 {v(BK1,4)}, v{VL16}, s[24:27], s40 offen')
    a(f'buffer_load_dwordx4 {v(BK1+4,4)}, v{VL16}, s[24:27], s40 offen offset:1024')
    a(f'buffer_load_dwordx4 {v(BV1,4)}, v{VL16}, s[24:27], s40 offen offset:3072')
    for st in range(1, 6): dma(st, None, st)
    a('s_waitcnt vmcnt(19)')
    a('s_branch K2_B0')
    a('K2_NOBL:')
    for st in range(1, 6): dma(st, None, st)
    a('s_waitcnt vmcnt(10)')
    a('K2_B0:')
    a('s_barrier')
    stamp(a, 2)
    for r in range(16): a(f'v_mov_b32 v{O+r}, 0')
    for r in range(4): a(f'v_mov_b32 v{P+4+r}, 0')
    for r in range(4): a(f'v_mov_b32 v{V+4+r}, 0')
    a('s_cmp_lg_u32 s47, 0')
    a('s_cbranch_scc1 K2_HAVEM')
    a(f'ds_read_b128 {v(K,4)}, v{VL16}')
    a(f'ds_read_b128 {v(K+4,4)}, v{VL16} offset:1024')
    a('s_waitcnt lgkmcnt(0)')
    a(f'v_mfma_f32_32x32x16_bf16 {v(S,16)}, {v(K,4)}, {v(Q,4)}, 0')
    a(f'v_mfma_f32_32x32x16_bf16 {v(S,16)}, {v(K+4,4)}, {v(Q+4,4)}, {v(S,16)}')
    a(f'v_max3_f32 v{VM}, v{S}, v{S+1}, v{S+2}')
    for r in range(3, 15, 2): a(f'v_max3_f32 v{VM}, v{VM}, v{S+r}, v{S+r+1}')
    a(f'v_max_f32 v{VM}, v{VM}, v{S+15}')
    a(f'v_mov_b32 v{T1}, v{VM}')
    a(f'v_permlane32_swap_b32 v{VM}, v{T1}')
    a(f'v_max_f32 v{VM}, v{VM}, v{T1}')
    a('K2_HAVEM:')
    a(f'ds_read_b128 {v(K,4)}, v{LA}')
    a(f'ds_read_b128 {v(K+4,4)}, v{LA} offset:1024')
    a(f'v_sub_f32 v{T1}, 0, v{VM}')
    a(f'v_and_b32 v{T2}, 0xffff0000, v{T1}')
    a(f'v_sub_f32 v{T1}, v{T1}, v{T2}')
    a(f'v_and_b32 v{T3}, 0xffff0000, v{T1}')
    a(f'v_sub_f32 v{T1}, v{T1}, v{T3}')
    a(f'v_lshrrev_b32 v{T2}, 16, v{T2}')
    a('s_mov_b32 exec_lo, 0')
    a(f'v_or_b32 v{Q+6}, v{T2}, v{T3}')
    a(f'v_lshrrev_b32 v{Q+7}, 16, v{T1}')
    a('s_mov_b64 exec, -1')
    a('s_waitcnt lgkmcnt(0)')
    a(f'v_mfma_f32_32x32x16_bf16 {v(S,16)}, {v(K,4)}, {v(Q,4)}, 0')
    a(f'v_mfma_f32_32x32x16_bf16 {v(S,16)}, {v(K+4,4)}, {v(Q+4,4)}, {v(S,16)}')
    a(f'ds_read_b128 {v(K,4)}, v{LA} offset:4096')
    a(f'ds_read_b128 {v(K+4,4)}, v{LA} offset:{4096+1024}')
    a(f'ds_read_b128 {v(V,4)}, v{LA} offset:2048')
    a('s_mov_b32 s48, 0')
    a('s_waitcnt lgkmcnt(0)')
    a('s_nop 7')
    def laddr(n, frag):
        st = (n >> 1) % NS
        reg = LA if st < 4 else LA2
        return f'v{reg} offset:{(st & 3)*STG + (n & 1)*4096 + frag*1024}'
    a('.p2align 6')
    a('K2_LOOP:')
    for n in range(16):
        Sc, Sn = S + 16 * (n & 1), S + 16 * ((n + 1) & 1)
        e = lambda r: a(f'v_exp_f32 v{Sc+r}, v{Sc+r}')
        c = lambda j: a(f'v_cvt_pk_bf16_f32 v{P+j}, v{Sc+2*j}, v{Sc+2*j+1}')
        a('s_waitcnt lgkmcnt(3)')
        a(f'v_mfma_f32_32x32x16_bf16 {v(Sn,16)}, {v(K,4)}, {v(Q,4)}, 0')
        if n % 2 == 0:
            s_ = n // 2
            a('s_waitcnt vmcnt(8)')
            a('s_barrier')
            dma((s_ + 6) % NS, True)
        a(f'ds_read_b128 {v(K,4)}, {laddr(n+2, 0)}')
        e(0); e(1); e(2); e(3)
        a('s_waitcnt lgkmcnt(3)')
        a(f'v_mfma_f32_32x32x16_bf16 {v(O,16)}, {v(V+4,4)}, {v(P+4,4)}, {v(O,16)}')
        a(f'ds_read_b128 {v(V+4,4)}, {laddr(n, 3)}')
        e(4); e(5); c(0); e(6); c(1); e(7)
        a('s_waitcnt lgkmcnt(3)')
        a(f'v_mfma_f32_32x32x16_bf16 {v(Sn,16)}, {v(K+4,4)}, {v(Q+4,4)}, {v(Sn,16)}')
        a(f'ds_read_b128 {v(K+4,4)}, {laddr(n+2, 1)}')
        e(8); c(2); e(9); c(3); e(10); e(11)
        a('s_waitcnt lgkmcnt(3)')
        a(f'v_mfma_f32_32x32x16_bf16 {v(O,16)}, {v(V,4)}, {v(P,4)}, {v(O,16)}')
        a(f'ds_read_b128 {v(V,4)}, {laddr(n+1, 2)}')
        e(12); e(13); e(14); e(15); c(4); c(5); c(6); c(7)
    a('s_add_u32 s48, s48, 1')
    a('s_cmp_lt_u32 s48, 2')
    a('s_cbranch_scc1 K2_LOOP')
    a('s_waitcnt lgkmcnt(0)')
    a(f'v_mfma_f32_32x32x16_bf16 {v(O,16)}, {v(V+4,4)}, {v(P+4,4)}, {v(O,16)}')
    stamp(a, 3)
    a(f's_mov_b32 s40, {f32bits(LTHR)}')
    a(f'v_cmp_nge_f32 vcc, s40, v{O+12}')
    a('s_mov_b32 s41, vcc_hi')
    a('s_cmp_lg_u32 s41, 0')
    a('s_cselect_b32 s41, 1, 0')
    a(f'v_mov_b32 v{T1}, s41')
    a('s_lshl_b32 s40, s36, 2')
    a(f's_add_u32 s40, s40, {FLAG}')
    a(f'v_mov_b32 v{T2}, s40')
    a(f'ds_write_b32 v{T2}, v{T1}')
    a('s_lshl_b32 s40, s37, 12')
    a(f's_add_u32 s40, s40, {SCR}')
    a(f'v_add_u32 v{T3}, s40, v{VL16}')
    a('s_cmp_eq_u32 s38, 0')
    a('s_cbranch_scc1 K2_RED0')
    for i in range(4): a(f'ds_write_b128 v{T3}, {v(O+4*i,4)} offset:{i*1024}')
    a('K2_RED0:')
    a('s_waitcnt lgkmcnt(0)')
    a('s_barrier')
    a(f'v_and_b32 v{T2}, 7, v0')
    a(f'v_lshlrev_b32 v{T2}, 2, v{T2}')
    a(f'v_add_u32 v{T2}, {FLAG}, v{T2}')
    a(f'ds_read_b32 v{T1}, v{T2}')
    a('s_cmp_eq_u32 s38, 0')
    a('s_cbranch_scc0 K2_RED1')
    for i in range(4): a(f'ds_read_b128 {v(S+4*i,4)}, v{T3} offset:{i*1024}')
    a('K2_RED1:')
    a('s_waitcnt lgkmcnt(0)')
    a(f'v_cmp_ne_u32 vcc, 0, v{T1}')
    a('s_cmp_lg_u32 s47, 0')
    a('s_cbranch_scc1 K2_NOFALL')
    a('s_cbranch_vccnz K2_SLOW')
    a('K2_NOFALL:')
    a('s_lshl_b32 s40, s39, 4')
    a('s_add_u32 s40, s40, s32')
    a('s_lshl_b32 s49, s40, 11')
    a('s_cmp_eq_u32 s38, 0')
    a('s_cbranch_scc0 K2_LOCAL')
    for r in range(16): a(f'v_add_f32 v{O+r}, v{O+r}, v{S+r}')
    a(f's_add_u32 s49, s49, {WS_OA}')
    def finish():
        a(f'v_mov_b32 v{T1}, v{O+12}')
        a(f'v_mov_b32 v{T2}, v{O+12}')
        a(f'v_permlane32_swap_b32 v{T1}, v{T2}')
        a(f'v_rcp_f32 v{T2}, v{T2}')
        for r in range(16): a(f'v_mul_f32 v{O+r}, v{O+r}, v{T2}')
        for j in range(8): a(f'v_cvt_pk_bf16_f32 v{O+j}, v{O+2*j}, v{O+2*j+1}')
        a('s_mov_b32 exec_lo, 0')
        a(f'v_mov_b32 v{O+6}, 0')
        a(f'v_mov_b32 v{O+7}, 0')
        a('s_mov_b64 exec, -1')
        a(f'buffer_store_dwordx4 {v(O,4)}, v{VL16}, s[24:27], s49 offen')
        a(f'buffer_store_dwordx4 {v(O+4,4)}, v{VL16}, s[24:27], s49 offen offset:1024')
        stamp(a, 4)
        if k1.STAMP: a('s_waitcnt vmcnt(0)')
        stamp(a, 5)
        stamp_flush(a, 6)
        a('s_endpgm')
    finish()
    a('K2_LOCAL:')
    S0, S1 = S, S + 16
    a(f'v_mfma_f32_32x32x16_bf16 {v(S0,16)}, {v(BK0,4)}, {v(BQ,4)}, 0')
    a(f'v_mfma_f32_32x32x16_bf16 {v(S1,16)}, {v(BK1,4)}, {v(BQ,4)}, 0')
    a(f'v_mfma_f32_32x32x16_bf16 {v(S0,16)}, {v(BK0+4,4)}, {v(BQ+4,4)}, {v(S0,16)}')
    a(f'v_mfma_f32_32x32x16_bf16 {v(S1,16)}, {v(BK1+4,4)}, {v(BQ+4,4)}, {v(S1,16)}')
    a(f'v_mov_b32 v{T4}, 0xff800000')
    a('s_cmp_eq_u32 s39, 0')
    a('s_cselect_b32 s50, 0, -1')
    def row(r, hh): return (r & 3) + 8 * (r >> 2) + 4 * hh
    ok = lambda d: 0 <= d <= 14 and d % 2 == 0
    for r in range(16):
        m = lane_mask(lambda q, hh: ok(q - row(r, hh)))
        a(f's_mov_b32 s52, {m & 0xffffffff}')
        a(f's_mov_b32 s53, {m >> 32}')
        a(f'v_cndmask_b32 v{S0+r}, v{T4}, v{S0+r}, s[52:53]')
    for r in range(8, 16):
        m = lane_mask(lambda q, hh: ok(q + 32 - row(r, hh)))
        a(f's_and_b32 s52, s50, {m & 0xffffffff}')
        a(f's_and_b32 s53, s50, {m >> 32}')
        a(f'v_cndmask_b32 v{S1+r}, v{T4}, v{S1+r}, s[52:53]')
    vals = [S0 + r for r in range(16)] + [S1 + r for r in range(8, 16)]
    a(f'v_max3_f32 v{VM}, v{vals[0]}, v{vals[1]}, v{vals[2]}')
    for i in range(3, 23, 2): a(f'v_max3_f32 v{VM}, v{VM}, v{vals[i]}, v{vals[i+1]}')
    a(f'v_max_f32 v{VM}, v{VM}, v{vals[23]}')
    a(f'v_mov_b32 v{T1}, v{VM}')
    a(f'v_permlane32_swap_b32 v{VM}, v{T1}')
    a(f'v_max_f32 v{VM}, v{VM}, v{T1}')
    for x in vals: a(f'v_sub_f32 v{x}, v{x}, v{VM}')
    for x in vals: a(f'v_exp_f32 v{x}, v{x}')
    for j in range(8): a(f'v_cvt_pk_bf16_f32 v{P+j}, v{S0+2*j}, v{S0+2*j+1}')
    for j in range(4): a(f'v_cvt_pk_bf16_f32 v{K+j}, v{S1+8+2*j}, v{S1+9+2*j}')
    a(f'v_mfma_f32_32x32x16_bf16 {v(O,16)}, {v(BV0,4)}, {v(P,4)}, 0')
    a(f'v_mfma_f32_32x32x16_bf16 {v(O,16)}, {v(BV0+4,4)}, {v(P+4,4)}, {v(O,16)}')
    a(f'v_mfma_f32_32x32x16_bf16 {v(O,16)}, {v(BV1,4)}, {v(K,4)}, {v(O,16)}')
    a(f's_add_u32 s49, s49, {WS_OB}')
    finish()
    a('K2_SLOW:')
    a('s_waitcnt vmcnt(0)')
    a('s_mov_b32 exec_lo, 0')
    a(f'v_mov_b32 v{Q+6}, 0')
    a(f'v_mov_b32 v{Q+7}, 0')
    a('s_mov_b64 exec, -1')
    a(f'v_mov_b32 v{VM}, 0xff800000')
    a('s_mov_b32 s46, 0')
    a('K2_SLOWLOOP:')
    a(f'buffer_load_dwordx4 {v(K,4)}, v{VL16}, s[16:19], s46 offen')
    a(f'buffer_load_dwordx4 {v(K+4,4)}, v{VL16}, s[16:19], s46 offen offset:1024')
    a('s_waitcnt vmcnt(0)')
    a(f'v_mfma_f32_32x32x16_bf16 {v(S,16)}, {v(K,4)}, {v(Q,4)}, 0')
    a(f'v_mfma_f32_32x32x16_bf16 {v(S,16)}, {v(K+4,4)}, {v(Q+4,4)}, {v(S,16)}')
    for r in range(0, 16, 2): a(f'v_max3_f32 v{VM}, v{VM}, v{S+r}, v{S+r+1}')
    a('s_add_u32 s46, s46, 4096')
    a('s_cmp_lt_u32 s46, 0x40000')
    a('s_cbranch_scc1 K2_SLOWLOOP')
    a(f'v_mov_b32 v{T1}, v{VM}')
    a(f'v_permlane32_swap_b32 v{VM}, v{T1}')
    a(f'v_max_f32 v{VM}, v{VM}, v{T1}')
    a('s_mov_b32 s47, 1')
    a('s_barrier')
    a('s_branch K2_RESTART')
    a('K2_END:')
    a('s_endpgm')
    return a

if __name__ == '__main__':
    a = gen_k2()
    t = a.finalize()
    print(len(t.splitlines()), a.max_vgpr(), a.max_sgpr())
```

```python
from asmlib import *
from k1 import *
import k1

GRID = 224
BLOCK = 512
IMG = 456 * 128
SCR3 = 2 * IMG
LDS_BYTES = SCR3 + 4 * 4096
WO_BYTES = 448 * 896
OUT_BYTES = 2048 * 896
AHEAD = 10

def gen_k3(name='k3_kernel'):
    a = Asm()
    stamp, stamp_flush = k1.stamp, k1.stamp_flush
    a(f'{name}:')
    if k1.STAMP: a('s_memrealtime s[60:61]')
    stamp(a, 0)
    a(f's_cmp_ge_u32 s2, {GRID}')
    a('s_cbranch_scc1 K3_END')
    a('s_load_dwordx2 s[4:5], s[0:1], 16')
    a('s_load_dwordx2 s[6:7], s[0:1], 40')
    a('s_load_dwordx2 s[8:9], s[0:1], 56')
    a('s_load_dwordx2 s[12:13], s[0:1], 72')
    a('s_and_b32 s40, s2, 7')
    a('s_lshr_b32 s41, s2, 3')
    a('s_lshl_b32 s32, s40, 2')
    a('s_and_b32 s42, s41, 3')
    a('s_add_u32 s32, s32, s42')
    a('s_lshr_b32 s33, s41, 2')
    a('v_lshrrev_b32 v1, 6, v0')
    a('v_and_b32 v0, 63, v0')
    a('v_readfirstlane_b32 s36, v1')
    a('s_and_b32 s37, s36, 1')
    a('s_bfe_u32 s38, s36, 0x10001')
    a('s_waitcnt lgkmcnt(0)')
    srd(a, 24, 12, WS_BYTES)
    a('s_cmp_eq_u32 s38, 0')
    a('s_cselect_b32 s4, s4, s6')
    a('s_cselect_b32 s5, s5, s7')
    srd(a, 20, 4, WO_BYTES)
    srd(a, 16, 8, OUT_BYTES)
    stamp(a, 1)
    a('s_cmp_ge_u32 s36, 4')
    a('s_cbranch_scc1 K3_LOADER')
    VL16, WA0, WA1, VG, VO, T1, T2, T3 = 2, 3, 4, 5, 6, 7, 8, 9
    WF, ACC, OF = 12, 28, 60
    NR = 16
    a(f'v_lshlrev_b32 v{VL16}, 4, v0')
    a('s_lshl_b32 s40, s32, 1')
    a('s_add_u32 s40, s40, s37')
    a('s_lshl_b32 s44, s40, 15')
    a(f's_mul_i32 s41, s38, {WS_OB - WS_OA}')
    a('s_add_u32 s44, s44, s41')
    a(f's_add_u32 s44, s44, {WS_OA}')
    def oload(n):
        r = OF + 4 * (n % NR)
        if n % 4 == 0 and n: a('s_add_u32 s44, s44, 4096')
        a(f'buffer_load_dwordx4 {v(r,4)}, v{VL16}, s[24:27], s44 offen offset:{(n%4)*1024}')
    a('v_and_b32 v1, 31, v0')
    a('s_lshl_b32 s41, s40, 7')
    a(f's_add_u32 s41, s41, {WS_G}')
    a(f'v_lshlrev_b32 v{T1}, 2, v1')
    a(f'buffer_load_dword v{VG}, v{T1}, s[24:27], s41 offen')
    for n in range(AHEAD): oload(n)
    a(f'v_lshrrev_b32 v{T1}, 5, v0')
    a(f'v_bfe_u32 v{T2}, v0, 2, 2')
    a(f'v_lshl_add_u32 v{T1}, v{T1}, 2, v{T2}')
    a(f'v_lshlrev_b32 v{T1}, 7, v{T1}')
    a(f'v_bfe_u32 v{T2}, v0, 3, 1')
    a(f'v_lshlrev_b32 v{T2}, 2, v{T2}')
    a(f'v_bfe_u32 v{T3}, v0, 4, 1')
    a(f'v_lshl_add_u32 v{T2}, v{T3}, 1, v{T2}')
    a(f'v_bfe_u32 v{T3}, v0, 1, 1')
    a(f'v_add_u32 v{T2}, v{T2}, v{T3}')
    a(f'v_and_b32 v{T3}, 1, v0')
    a(f'v_lshl_add_u32 v{T1}, v{T3}, 3, v{T1}')
    a(f's_mul_i32 s41, s38, {IMG}')
    a(f'v_add_u32 v{T1}, s41, v{T1}')
    a(f'v_lshl_add_u32 v{WA0}, v{T2}, 4, v{T1}')
    a(f'v_xor_b32 v{T2}, 4, v{T2}')
    a(f'v_lshl_add_u32 v{WA1}, v{T2}, 4, v{T1}')
    a('s_lshl_b32 s41, s40, 5')
    a('v_add_u32 v1, s41, v1')
    a(f'v_mul_u32_u24 v{VO}, 896, v1')
    a(f'v_lshrrev_b32 v{T1}, 5, v0')
    a(f'v_lshl_add_u32 v{VO}, v{T1}, 4, v{VO}')
    a('s_lshl_b32 s45, s33, 7')
    a('s_lshl_b32 s41, s38, 6')
    a('s_add_u32 s45, s45, s41')
    def wreads(n):
        h, ks = n >> 1, n & 1
        b = WF + 8 * (n & 1)
        L = []
        for nt, wa in ((0, WA0), (1, WA1)):
            for u in range(2):
                L.append(f'ds_read_b64_tr_b16 {v(b+4*nt+2*u,2)}, v{wa} offset:{(28*h+16*ks+8*u)*128}')
        return L
    a('s_barrier')
    stamp(a, 2)
    for r in wreads(0): a(r)
    for n in range(32):
        b = WF + 8 * (n & 1)
        of = v(OF + 4 * (n % NR), 4)
        issued = min(32, n + AHEAD)
        a(f's_waitcnt vmcnt({issued - n - 1}) lgkmcnt(0)')
        a(f'v_mfma_f32_32x32x16_bf16 {v(ACC,16)}, {v(b,4)}, {of}, {v(ACC,16) if n else 0}')
        if n + 1 < 32:
            if (n + 1) % 8 == 0: a('s_barrier')
            for r in wreads(n + 1): a(r)
        a(f'v_mfma_f32_32x32x16_bf16 {v(ACC+16,16)}, {v(b+4,4)}, {of}, {v(ACC+16,16) if n else 0}')
        if n + AHEAD < 32: oload(n + AHEAD)
    stamp(a, 3)
    a('s_lshl_b32 s41, s36, 12')
    a(f's_add_u32 s41, s41, {SCR3}')
    a(f'v_add_u32 v{T1}, s41, v{VL16}')
    a('s_xor_b32 s41, s36, 2')
    a('s_lshl_b32 s41, s41, 12')
    a(f's_add_u32 s41, s41, {SCR3}')
    a(f'v_add_u32 v{T2}, s41, v{VL16}')
    a(f'v_sub_f32 v{T3}, 1.0, v{VG}')
    a('s_nop 3')
    a('s_cmp_eq_u32 s38, 0')
    a('s_cbranch_scc0 K3_BR1')
    for br in range(2):
        if br: a('K3_BR1:')
        keep, send = ACC + 16 * br, ACC + 16 * (1 - br)
        for i in range(4): a(f'ds_write_b128 v{T1}, {v(send+4*i,4)} offset:{i*1024}')
        mine, other = (VG, T3) if br == 0 else (T3, VG)
        for r in range(16): a(f'v_mul_f32 v{keep+r}, v{keep+r}, v{mine}')
        a('s_waitcnt lgkmcnt(0)')
        a('s_barrier')
        for i in range(4): a(f'ds_read_b128 {v(OF+4*i,4)}, v{T2} offset:{i*1024}')
        a('s_waitcnt lgkmcnt(0)')
        for r in range(16): a(f'v_fmac_f32 v{keep+r}, v{OF+r}, v{other}')
        for j in range(8): a(f'v_cvt_pk_bf16_f32 v{keep+j}, v{keep+2*j}, v{keep+2*j+1}')
        for p in range(2):
            a(f'v_permlane32_swap_b32 v{keep+4*p}, v{keep+4*p+2}')
            a(f'v_permlane32_swap_b32 v{keep+4*p+1}, v{keep+4*p+3}')
        for p in range(2):
            a(f'buffer_store_dwordx4 {v(keep+4*p,4)}, v{VO}, s[16:19], s45 offen offset:{32*p}')
        stamp(a, 4)
        if k1.STAMP: a('s_waitcnt vmcnt(0)')
        stamp(a, 5)
        stamp_flush(a, 6)
        a('s_endpgm')
    a('K3_LOADER:')
    a('v_lshrrev_b32 v2, 3, v0')
    a('v_mul_u32_u24 v2, 896, v2')
    a('v_and_b32 v3, 7, v0')
    a('v_bfe_u32 v4, v0, 4, 1')
    a('v_lshlrev_b32 v4, 2, v4')
    a('v_xor_b32 v3, v3, v4')
    a('v_lshl_add_u32 v2, v3, 4, v2')
    a(f's_mul_i32 s44, s37, {7*8*896}')
    a('s_lshl_b32 s41, s33, 7')
    a('s_add_u32 s44, s44, s41')
    a(f's_mul_i32 s45, s38, {IMG}')
    a(f's_mul_i32 s41, s37, {7*1024}')
    a('s_add_u32 s45, s45, s41')
    def issue(st):
        idx = range(8) if st == 0 else range(1 + 14*st, 8 + 14*st)
        for i in idx:
            a(f's_add_u32 m0, s45, {i*1024}')
            a(f's_add_u32 s46, s44, {i*8*896}')
            a(f'buffer_load_dwordx4 v2, s[20:23], s46 offen lds')
    issue(0)
    issue(1)
    a('s_waitcnt vmcnt(7)')
    a('s_barrier')
    issue(2)
    a('s_waitcnt vmcnt(7)')
    a('s_barrier')
    issue(3)
    a('s_waitcnt vmcnt(7)')
    a('s_barrier')
    a('s_waitcnt vmcnt(0)')
    a('s_barrier')
    a('s_barrier')
    a('K3_END:')
    a('s_endpgm')
    return a

if __name__ == '__main__':
    a = gen_k3()
    t = a.finalize()
    print(len(t.splitlines()), a.max_vgpr(), a.max_sgpr())
```

```python
import sys, os
sys.path.insert(0, os.path.dirname(__file__))
from build import compose
import k1
def kernels(which='all'):
    ks = [('k1_kernel', k1.gen_k1(), 256, 512, 163840)]
    if which == 'k1': return ks
    import k2
    ks.append(('k2_kernel', k2.gen_k2(), 256, 512, k2.LDS_BYTES))
    if which == 'k12': return ks
    import k3
    ks.append(('k3_kernel', k3.gen_k3(), k3.GRID, k3.BLOCK, k3.LDS_BYTES))
    return ks
if __name__ == '__main__':
    which = sys.argv[1] if len(sys.argv) > 1 else 'all'
    outp = sys.argv[2] if len(sys.argv) > 2 else 'gated_mix__mha_block__sliding_local_dilated__prompt.s'
    open(outp, 'w').write(compose(kernels(which)))
    print('wrote', outp, os.path.getsize(outp))
```

```python
import sys, re
from build import compose
from asmlib import *
import k1, k2, k3
def instrument(a, idx):
    out = Asm()
    first = True
    for ins in a.ins:
        t = ins.text
        if ins.cls == 'label' and first:
            out.ins.append(ins); first = False
            out('s_memrealtime s[90:91]')
            out('s_load_dwordx2 s[92:93], s[0:1], 64')
            out('v_mov_b32 v200, v0')
            continue
        if ins.op == 's_endpgm':
            out('s_waitcnt vmcnt(0) lgkmcnt(0)')
            out('s_memrealtime s[94:95]')
            out('s_waitcnt lgkmcnt(0)')
            out(f's_sub_u32 s96, s92, {512*idx}')
            out('s_subb_u32 s97, s93, 0')
            out('s_and_b32 s97, s97, 0xffff')
            out('s_mov_b32 s98, 256')
            out('s_mov_b32 s99, 0x00020000')
            out('s_not_b32 s90, s90')
            out('s_mov_b64 exec, 1')
            out('v_mov_b32 v201, s90')
            out('v_mov_b32 v202, s94')
            out('v_mov_b32 v203, 0')
            out(f'buffer_atomic_umax v201, v203, s[96:99], 0 offen offset:{8*idx}')
            out(f'buffer_atomic_umax v202, v203, s[96:99], 0 offen offset:{8*idx+4}')
            out('s_endpgm')
            continue
        out.ins.append(ins)
    return out
ks = [('k1_kernel', instrument(k1.gen_k1(), 0), 256, 512, 163840), ('k2_kernel', instrument(k2.gen_k2(), 1), 256, getattr(k2, 'BLOCK', 512), k2.LDS_BYTES), ('k3_kernel', instrument(k3.gen_k3(), 2), k3.GRID, k3.BLOCK, k3.LDS_BYTES)]
open('var_dbg.s', 'w').write(compose(ks))
```

```python
import sys, re
from build import compose
from asmlib import *
import k1, k2, k3
TGT = int(sys.argv[1])
def instrument(a, idx):
    out = Asm()
    first = True
    for ins in a.ins:
        t = ins.text
        if ins.cls == 'label' and first:
            out.ins.append(ins); first = False
            out('s_memrealtime s[90:91]')
            out('s_load_dwordx2 s[92:93], s[0:1], 64')
            out('v_mov_b32 v200, v0')
            continue
        if ins.op == 's_endpgm':
            out('s_waitcnt vmcnt(0) lgkmcnt(0)')
            out('s_memrealtime s[94:95]')
            out('s_waitcnt lgkmcnt(0)')
            out(f's_add_u32 s96, s92, {512*(TGT-idx)}' if TGT >= idx else f's_sub_u32 s96, s92, {512*(idx-TGT)}')
            out('s_addc_u32 s97, s93, 0' if TGT >= idx else 's_subb_u32 s97, s93, 0')
            out('s_and_b32 s97, s97, 0xffff')
            out('s_mov_b32 s98, 256')
            out('s_mov_b32 s99, 0x00020000')
            out('s_not_b32 s90, s90')
            out('s_mov_b64 exec, -1')
            out('s_and_b32 s91, s2, 31')
            out('v_add_u32 v200, s91, v200')
            out('v_cmp_eq_u32 vcc, 0, v200')
            out('s_and_b64 exec, exec, vcc')
            out(f's_cbranch_execz DBG_SKIP{len(out.ins)}')
            lab = f'DBG_SKIP{len(out.ins)-1}'
            out('v_mov_b32 v201, s90')
            out('v_mov_b32 v202, s94')
            out('v_mov_b32 v203, 0')
            out(f'buffer_atomic_umax v201, v203, s[96:99], 0 offen offset:{8*idx}')
            out(f'buffer_atomic_umax v202, v203, s[96:99], 0 offen offset:{8*idx+4}')
            out(lab + ':')
            out('s_endpgm')
            continue
        out.ins.append(ins)
    return out
ks = [('k1_kernel', instrument(k1.gen_k1(), 0), 256, 512, 163840), ('k2_kernel', instrument(k2.gen_k2(), 1), 256, getattr(k2, 'BLOCK', 512), k2.LDS_BYTES), ('k3_kernel', instrument(k3.gen_k3(), 2), k3.GRID, k3.BLOCK, k3.LDS_BYTES)]
open('var_dbg%d.s' % TGT + '', 'w').write(compose(ks))
```
